```python
import torch

def _softmax(x, axis=-1):
    return torch.softmax(x, dim=axis)
def _gelu(x):
    return torch.nn.functional.gelu(x, approximate="tanh")
def _silu(x):
    return torch.nn.functional.silu(x)
def _sigmoid(x):
    return torch.sigmoid(x)
def _layernorm(x, axis=-1, eps=1e-5):
    m = x.mean(dim=axis, keepdim=True)
    v = x.var(dim=axis, keepdim=True, unbiased=False)
    return (x - m) / torch.sqrt(v + eps)
def _scatter_add(tgt, idx, src, axis=0):
    return tgt.clone().index_add_(axis, idx, src)
def _segment_sum(src, seg, n):
    out = torch.zeros((n,) + src.shape[1:], dtype=src.dtype)
    return out.index_add_(0, seg, src)
def _pad(x, pw):
    flat = tuple(v for pair in reversed(pw) for v in pair)
    return torch.nn.functional.pad(x, flat)

kernel_name = 'gated_mix__linear_kernel_hedgehog__mha_block__prompt'

def setup_inputs():

    _w = (lambda a: (lambda t: t.to(torch.bfloat16) if t.is_floating_point() else t)(torch.as_tensor(a)))
    def _A_setup():
        B, S, D, H = 1, 2048, 1024, 32
        Dh = D // H
        return {
            "x": _w((lambda *s: torch.randn(*s, dtype=torch.bfloat16) * 0.05)(B, S, D)),
            "wqkv": _w((lambda *s: torch.randn(*s, dtype=torch.bfloat16) * 3.2)(D, 3 * D)),
            "w_phi": _w((lambda *s: torch.randn(*s, dtype=torch.bfloat16) * 3.2)(H, Dh, Dh) * (Dh ** -0.5)),
            "wo": _w((lambda *s: torch.randn(*s, dtype=torch.bfloat16) * 1.6)(D, D)),
        }
    _A_in = _A_setup()

    def _B_setup():
        B, S, D, H = 1, 2048, 1024, 32
        return {
            "x": _w((lambda *s: torch.randn(*s, dtype=torch.bfloat16) * 0.05)(B, S, D)),
            "wqkv": _w((lambda *s: torch.randn(*s, dtype=torch.bfloat16) * 3.2)(D, 3 * D)),
            "wo": _w((lambda *s: torch.randn(*s, dtype=torch.bfloat16) * 0.1)(D, D)),
        }
    _B_in = _B_setup()

    return {
        "A_x": _A_in["x"],
        "A_wqkv": _A_in["wqkv"],
        "A_w_phi": _A_in["w_phi"],
        "A_wo": _A_in["wo"],
        "B_x": _B_in["x"],
        "B_wqkv": _B_in["wqkv"],
        "B_wo": _B_in["wo"],
        "gate_w": _w((lambda *s: torch.randn(*s, dtype=torch.bfloat16) * 0.4)(1024) * 16.0),
    }

def reference(A_x, A_wqkv, A_w_phi, A_wo, B_x, B_wqkv, B_wo, gate_w):
    def _A_ref(x, wqkv, w_phi, wo):
        B, S, D = x.shape
        H = 32; Dh = D // H
        qkv = (lambda x, *d: x.permute(*d))((x @ wqkv).reshape(B, S, 3, H, Dh), 2, 0, 3, 1, 4)
        q, k, v = qkv[0], qkv[1], qkv[2]
        pq = torch.einsum("bhsd,hdf->bhsf", q, w_phi)
        pk = torch.einsum("bhsd,hdf->bhsf", k, w_phi)
        phi_q = torch.concatenate([_softmax(pq, axis=-1), _softmax(-pq, axis=-1)], axis=-1)
        phi_k = torch.concatenate([_softmax(pk, axis=-1), _softmax(-pk, axis=-1)], axis=-1)
        kv = torch.einsum("bhsf,bhsd->bhfd", phi_k, v)
        z  = torch.einsum("bhsf->bhf", phi_k)
        num = torch.einsum("bhqf,bhfd->bhqd", phi_q, kv)
        den = torch.einsum("bhqf,bhf->bhq", phi_q, z)[..., None] + 1e-6
        o = num / den
        return (lambda x, *d: x.permute(*d))(o, 0, 2, 1, 3).reshape(B, S, D) @ wo

    def _B_ref(x, wqkv, wo):
        B, S, D = x.shape
        H = 32
        Dh = D // H
        qkv = (lambda x, *d: x.permute(*d))((x @ wqkv).reshape(B, S, 3, H, Dh), 2, 0, 3, 1, 4)
        q, k, v = qkv[0], qkv[1], qkv[2]
        scores = torch.einsum("bhqd,bhkd->bhqk", q, k) * (Dh ** -0.5)
        p = _softmax(scores, axis=-1)
        o = torch.einsum("bhqk,bhkd->bhqd", p, v)
        return (lambda x, *d: x.permute(*d))(o, 0, 2, 1, 3).reshape(B, S, D) @ wo

    x = A_x
    g = _sigmoid((x * gate_w).sum(-1, keepdims=True))
    a = _A_ref(x, A_wqkv, A_w_phi, A_wo)
    b = _B_ref(x, B_wqkv, B_wo)
    return g * a + (1 - g) * b
```

```python
import re

def v(i, n=1):
    return f"v{i}" if n == 1 else f"v[{i}:{i+n-1}]"
def s(i, n=1):
    return f"s{i}" if n == 1 else f"s[{i}:{i+n-1}]"

class Asm:
    def __init__(self):
        self.lines = []
    def __call__(self, text):
        for l in text.split("\n"):
            l = l.strip()
            if l:
                self.lines.append(l)
    def label(self, name):
        self.lines.append(name + ":")
    def extend(self, lst):
        for x in lst:
            self(x)
    def text(self):
        out = []
        for l in self.lines:
            if l.endswith(":") or l.startswith("."):
                out.append(l)
            else:
                out.append("    " + l)
        return "\n".join(out) + "\n"

def interleave(main, fill, start=0):
    out = []
    n = len(main)
    k = 0
    for j, m in enumerate(main):
        out.append(m)
        e = int(round((j + 1) * len(fill) / n))
        out += fill[k:e]
        k = e
    return out

_REG = re.compile(r"^(-|\|)?(abs\()?([vsa])(\d+|\[(\d+):(\d+)\])\)?\|?$")
def regs_of(tok):
    tok = tok.strip()
    tok = tok.lstrip("-").replace("|", "")
    if tok.startswith("abs(") or tok.startswith("neg("):
        tok = tok[4:-1]
    if tok == "vcc": return {("s", 106), ("s", 107)}
    if tok in ("vcc_lo",): return {("s", 106)}
    if tok in ("vcc_hi",): return {("s", 107)}
    if tok == "exec": return {("s", 126), ("s", 127)}
    if tok == "m0": return {("s", 124)}
    m = re.match(r"^([vsa])(\d+)$", tok)
    if m: return {(m.group(1), int(m.group(2)))}
    m = re.match(r"^([vsa])\[(\d+):(\d+)\]$", tok)
    if m: return {(m.group(1), i) for i in range(int(m.group(2)), int(m.group(3)) + 1)}
    return set()

TRANS = ("v_exp_", "v_log_", "v_rcp_", "v_rsq_", "v_sqrt_", "v_sin_", "v_cos_")
class I:
    def __init__(self, text):
        self.text = text
        t = text.split(";")[0].strip()
        p = t.split(None, 1)
        self.mn = p[0]
        rest = p[1] if len(p) > 1 else ""
        ops = [o.strip() for o in re.split(r",(?![^\[]*\])", rest)] if rest else []
        self.mods = ""
        if ops:
            last = ops[-1].split()
            if last:
                ops[-1] = last[0]
                self.mods = " ".join(last[1:])
        self.ops = ops
        mn = self.mn
        self.kind = "other"
        self.w = set(); self.r = set()
        R = [regs_of(o) for o in ops]
        if mn.startswith("v_mfma"):
            self.kind = "mfma"
            self.w = R[0]; self.a = R[1]; self.b = R[2]; self.c = R[3]; self.r = R[1] | R[2] | R[3]
            self.passes = 8 if "32x32x16" in mn else 4 if "16x16x32" in mn else None
            assert self.passes, mn
        elif mn.startswith("v_"):
            self.kind = "valu"
            self.trans = mn.startswith(TRANS)
            if mn.startswith("v_cmp"):
                self.w = R[0]; self.r = set().union(*R[1:])
            elif mn.startswith("v_permlane32_swap") or mn.startswith("v_permlane16_swap"):
                self.w = R[0] | R[1]; self.r = R[0] | R[1]
            elif mn.startswith(("v_add_co", "v_sub_co", "v_addc_co", "v_subb_co")):
                self.w = R[0] | R[1]; self.r = set().union(*R[2:])
            else:
                self.w = R[0]; self.r = set().union(*R[1:]) if len(R) > 1 else set()
                if mn.startswith(("v_fmac", "v_dot2c", "v_pk_fmac", "v_writelane")) or "UNUSED_PRESERVE" in self.mods:
                    self.r |= R[0]
                if mn.startswith("v_cndmask") and len(ops) == 3:
                    self.r |= regs_of("vcc")
            self.dpp = "_dpp" in mn or "row_" in self.mods or "quad_perm" in self.mods
        elif mn.startswith("ds_"):
            self.kind = "ds"
            if mn.startswith(("ds_read", "ds_bpermute", "ds_permute", "ds_swizzle")):
                self.w = R[0]; self.r = set().union(*R[1:])
            else:
                self.r = set().union(*R)
        elif mn.startswith(("buffer_", "global_")):
            self.kind = "vmem"
            lds = "lds" in self.mods.split()
            self.lds = lds or "_lds_" in mn
            isstore = "store" in mn
            isatomic = "atomic" in mn
            if mn.startswith(("buffer_inv", "buffer_wbl2")):
                pass
            elif self.lds:
                self.r = set().union(*R) | {("s", 124)}
            elif isstore or isatomic:
                self.r = set().union(*R)
                if isatomic and "sc0" in self.mods.split():
                    self.w = R[0]
            else:
                self.w = R[0]; self.r = set().union(*R[1:])
            self.wide_store = isstore and ("x4" in mn or "x3" in mn)
            if self.wide_store:
                self.data = R[0] if mn.startswith("buffer_") else R[1]
        elif mn.startswith("s_"):
            self.kind = "salu"
            if mn.startswith("s_nop"):
                self.nop = int(ops[0], 0) + 1
            elif mn.startswith(("s_cmp", "s_cbranch", "s_branch", "s_waitcnt", "s_barrier", "s_endpgm", "s_setprio", "s_sleep", "s_bitcmp")):
                self.r = set().union(*R) if R else set()
            else:
                self.w = R[0] if R else set(); self.r = set().union(*R[1:]) if len(R) > 1 else set()
                if "saveexec" in mn: self.w = self.w | regs_of("exec")
    def states(self):
        return getattr(self, "nop", 1)

def need(p, c):
    n = 0
    why = ""
    def up(k, w):
        nonlocal n, why
        if k > n: n, why = k, w
    vw = {r for r in p.w if r[0] in "va"}
    sw = {r for r in p.w if r[0] == "s"}
    if p.kind == "valu":
        if c.kind == "mfma" and vw & c.r: up(2, "valu->mfma")
        if c.kind == "valu":
            if p.trans and not c.trans and vw & c.r: up(1, "trans->valu")
            if c.mn.startswith(("v_readfirstlane", "v_readlane")) and vw & c.r: up(1, "valu->readlane")
            if c.mn.startswith("v_permlane") and vw & c.r: up(2, "valu->permlane")
            if c.dpp and vw & c.r: up(2, "valu->dpp")
            if sw & c.r: up(4 if c.mn.startswith(("v_readlane", "v_writelane")) else 2, "valu sgpr->valu")
        if c.kind == "vmem" and sw & c.r: up(5, "valu sgpr->vmem")
        if c.kind == "mfma" and (sw & regs_of("exec")): up(4, "valu exec->mfma")
    if p.kind == "mfma":
        P = p.passes
        if c.kind == "mfma":
            if p.w & (c.a | c.b): up({4: 8, 8: 12}[P], "mfma->mfma A/B")
            if p.w & c.c and not (p.w == c.c and p.passes == c.passes): up({4: 6, 8: 10}[P], "mfma->mfma C overlap")
            if p.w & c.w and not (p.w == c.w and p.w == c.c and p.passes == c.passes) and not (p.w & c.c):
                up({4: 8, 8: 12}[P], "mfma->mfma WAW")
        elif c.kind in ("valu", "ds", "vmem"):
            if p.w & (c.r | c.w): up({4: 8, 8: 12}[P], "mfma D->" + c.kind)
            if c.kind == "valu" and p.c & c.w: up({4: 3, 8: 7}[P], "mfma C WAR")
    if p.kind == "vmem" and getattr(p, "wide_store", False):
        if c.kind in ("valu", "mfma") and p.data & c.w: up(2, "store data WAR")
        elif c.kind in ("ds", "vmem") and p.data & c.w: up(1, "store data WAR")
    if p.kind == "salu" and ("s", 124) in p.w and c.kind == "vmem" and getattr(c, "lds", False): up(1, "m0->lds dma")
    return n, why

def check_seq(seq, report, tag=""):
    bad = 0
    for j, c in enumerate(seq):
        dist = 0
        for i in range(j - 1, max(-1, j - 24), -1):
            p = seq[i]
            k, why = need(p, c)
            if k > dist:
                report(f"HAZARD{tag} [{why}] need {k} have {dist}: '{p.text}' -> '{c.text}'")
                bad += 1
            dist += p.states()
            if dist >= 20: break
    return bad

def check(text, verbose=True):
    lines = []
    for l in text.split("\n"):
        l = l.split(";")[0].strip()
        if not l or l.startswith("."):
            continue
        lines.append(l)
    ins = []; labels = {}
    for l in lines:
        if l.endswith(":"):
            labels[l[:-1]] = len(ins)
        else:
            ins.append(I(l))
    msgs = []
    seen = set()
    def rep(m):
        if m not in seen:
            seen.add(m); msgs.append(m)
    seg = []
    for x in ins:
        seg.append(x)
        if x.mn in ("s_endpgm", "s_branch", "s_setpc_b64"):
            check_seq(seg, rep); seg = []
    check_seq(seg, rep)
    for j, x in enumerate(ins):
        if x.mn.startswith(("s_cbranch", "s_branch")):
            tgt = x.ops[0]
            if tgt in labels:
                t = labels[tgt]
                pre = ins[max(0, j - 24): j + 1]
                post = []
                for y in ins[t: t + 24]:
                    post.append(y)
                    if y.mn in ("s_endpgm", "s_branch"): break
                check_seq(pre + post, rep, tag=" (taken " + tgt + ")")
    if verbose:
        for m in msgs: print(m)
    return msgs

def fix_hazards(lines):
    out = []
    hist = []
    for l in lines:
        t = l.split(";")[0].strip()
        if not t or t.endswith(":") or t.startswith("."):
            out.append(l); continue
        c = I(t)
        dist = 0; pad = 0
        for p in reversed(hist[-24:]):
            k, _ = need(p, c)
            if k - dist > pad: pad = k - dist
            dist += p.states()
            if dist >= 20: break
        while pad > 0:
            n = min(pad, 16)
            nop = f"s_nop {n-1}"
            out.append(nop); hist.append(I(nop)); pad -= n
        out.append(l); hist.append(c)
        if c.mn in ("s_endpgm", "s_branch"): hist = []
    return out
```

```python
from asmlib import v, s, Asm, interleave

S, D, H, DH = 2048, 1024, 32, 32
MB = 1 << 20
WS_QB   = 0
WS_KV   = 4 * MB
WS_PHIQ = 12 * MB
WS_KVP  = 20 * MB
WS_ZP   = 22 * MB
WS_G    = 22 * MB + MB // 2
WS_O    = 24 * MB
WS_SIZE = 32 * MB
LOG2E = 1.4426950408889634
QSCALE = LOG2E / (32 ** 0.5)

import struct
def f32bits(x):
    return struct.unpack("<I", struct.pack("<f", x))[0]

def mfma32(d, a, b, c):
    cc = c if isinstance(c, str) else v(c, 16)
    return f"v_mfma_f32_32x32x16_bf16 {v(d,16)}, {v(a,4)}, {v(b,4)}, {cc}"
def mfma16(d, a, b, c):
    cc = c if isinstance(c, str) else v(c, 4)
    return f"v_mfma_f32_16x16x32_bf16 {v(d,4)}, {v(a,4)}, {v(b,4)}, {cc}"

def srd(a, base, lo, hi, size):
    a(f"s_mov_b32 s{base}, {lo}")
    a(f"s_mov_b32 s{base+1}, {hi}")
    a(f"s_mov_b32 s{base+2}, {size:#x}")
    a(f"s_mov_b32 s{base+3}, 0x20000")

def srd_off(a, base, lo, hi, off_sgpr, size_total):
    a(f"s_add_u32 s{base}, {lo}, {off_sgpr}")
    a(f"s_addc_u32 s{base+1}, {hi}, 0")
    a(f"s_sub_u32 s{base+2}, {size_total:#x}, {off_sgpr}")
    a(f"s_mov_b32 s{base+3}, 0x20000")

def cvt_pack(dst, src, n):
    return [f"v_cvt_pk_bf16_f32 v{dst+i}, v{src+2*i}, v{src+2*i+1}" for i in range(n)]

def unpack_bf16(dst, src, n):
    o = []
    for i in range(n):
        o.append(f"v_lshlrev_b32 v{dst+2*i}, 16, v{src+i}")
        o.append(f"v_and_b32 v{dst+2*i+1}, 0xffff0000, v{src+i}")
    return o

def tree3(op3, op2, dst, regs):
    o = [f"{op3} v{dst}, v{regs[0]}, v{regs[1]}, v{regs[2]}"]
    i = 3
    while i + 1 < len(regs):
        o.append(f"{op3} v{dst}, v{dst}, v{regs[i]}, v{regs[i+1]}")
        i += 2
    if i < len(regs):
        o.append(f"{op2} v{dst}, v{dst}, v{regs[i]}")
    return o

def halves_reduce(op2, reg, tmp):
    return [f"v_mov_b32 v{tmp}, v{reg}",
            f"v_permlane32_swap_b32 v{reg}, v{tmp}",
            f"{op2} v{reg}, v{reg}, v{tmp}"]

def kernel_head(name):
    return [f".globl {name}", ".p2align 8", f".type {name},@function", f"{name}:"]

def kernel_desc(name, vgpr):
    n = (vgpr + 3) // 4 * 4
    return f""".amdhsa_kernel {name}
  .amdhsa_next_free_vgpr {n}
  .amdhsa_next_free_sgpr 102
  .amdhsa_accum_offset {n}
  .amdhsa_group_segment_fixed_size 0
  .amdhsa_kernarg_size 88
  .amdhsa_user_sgpr_count 2
  .amdhsa_user_sgpr_kernarg_segment_ptr 1
  .amdhsa_system_sgpr_workgroup_id_x 1
.end_amdhsa_kernel
"""
```

```python
import sys, os, importlib
sys.path.insert(0, os.path.dirname(__file__))
from asmlib import fix_hazards, check
from common import *

HEADER = open("gated_mix__linear_kernel_hedgehog__mha_block__prompt.s.ref").read().split("; Override launch")[0]

def build(mods, path):
    launches, body, descs = [], [], []
    for m in mods:
        lines, nv = m.gen()
        lines = fix_hazards(lines)
        txt = "\n".join(l if (l.endswith(":") or l.startswith(".")) else "    " + l for l in lines) + "\n"
        msgs = check(txt)
        assert not msgs, msgs
        launches.append(f"; @launch kernel={m.NAME} grid=(256,1,1) block=({getattr(m,'BLOCK',512)},1,1) lds={m.LDS}")
        body.append(txt)
        descs.append(kernel_desc(m.NAME, nv))
    out = HEADER + "\n".join(launches) + "\n"
    out += '.amdgcn_target "amdgcn-amd-amdhsa--gfx950"\n.text\n' + "\n".join(body)
    out += '.section .rodata,"a"\n' + "".join(".p2align 6\n" + d for d in descs)
    open(path, "w").write(out)
    return out

if __name__ == "__main__":
    names = sys.argv[2:] or ["k1", "k2", "k3"]
    mods = [importlib.import_module(n) for n in names]
    out = build(mods, sys.argv[1])
    print("wrote", sys.argv[1], len(out), "bytes")
```

```python
from asmlib import v, s, Asm, interleave

S, D, H, DH = 2048, 1024, 32, 32
MB = 1 << 20
WS_QB   = 0
WS_KV   = 4 * MB
WS_PHIQ = 12 * MB
WS_KVP  = 20 * MB
WS_ZP   = 22 * MB
WS_G    = 22 * MB + MB // 2
WS_O    = 24 * MB
WS_SIZE = 32 * MB
LOG2E = 1.4426950408889634
QSCALE = LOG2E / (32 ** 0.5)

import struct
def f32bits(x):
    return struct.unpack("<I", struct.pack("<f", x))[0]

def mfma32(d, a, b, c):
    cc = c if isinstance(c, str) else v(c, 16)
    return f"v_mfma_f32_32x32x16_bf16 {v(d,16)}, {v(a,4)}, {v(b,4)}, {cc}"
def mfma16(d, a, b, c):
    cc = c if isinstance(c, str) else v(c, 4)
    return f"v_mfma_f32_16x16x32_bf16 {v(d,4)}, {v(a,4)}, {v(b,4)}, {cc}"

def srd(a, base, lo, hi, size):
    a(f"s_mov_b32 s{base}, {lo}")
    a(f"s_mov_b32 s{base+1}, {hi}")
    a(f"s_mov_b32 s{base+2}, {size:#x}")
    a(f"s_mov_b32 s{base+3}, 0x20000")

def srd_off(a, base, lo, hi, off_sgpr, size_total):
    a(f"s_add_u32 s{base}, {lo}, {off_sgpr}")
    a(f"s_addc_u32 s{base+1}, {hi}, 0")
    a(f"s_sub_u32 s{base+2}, {size_total:#x}, {off_sgpr}")
    a(f"s_mov_b32 s{base+3}, 0x20000")

def cvt_pack(dst, src, n):
    return [f"v_cvt_pk_bf16_f32 v{dst+i}, v{src+2*i}, v{src+2*i+1}" for i in range(n)]

def unpack_bf16(dst, src, n):
    o = []
    for i in range(n):
        o.append(f"v_lshlrev_b32 v{dst+2*i}, 16, v{src+i}")
        o.append(f"v_and_b32 v{dst+2*i+1}, 0xffff0000, v{src+i}")
    return o

def tree3(op3, op2, dst, regs):
    o = [f"{op3} v{dst}, v{regs[0]}, v{regs[1]}, v{regs[2]}"]
    i = 3
    while i + 1 < len(regs):
        o.append(f"{op3} v{dst}, v{dst}, v{regs[i]}, v{regs[i+1]}")
        i += 2
    if i < len(regs):
        o.append(f"{op2} v{dst}, v{dst}, v{regs[i]}")
    return o

def halves_reduce(op2, reg, tmp):
    return [f"v_mov_b32 v{tmp}, v{reg}",
            f"v_permlane32_swap_b32 v{reg}, v{tmp}",
            f"{op2} v{reg}, v{reg}, v{tmp}"]

def kernel_head(name):
    return [f".globl {name}", ".p2align 8", f".type {name},@function", f"{name}:"]

def kernel_desc(name, vgpr):
    n = (vgpr + 3) // 4 * 4
    return f""".amdhsa_kernel {name}
  .amdhsa_next_free_vgpr {n}
  .amdhsa_next_free_sgpr 102
  .amdhsa_accum_offset {n}
  .amdhsa_group_segment_fixed_size 0
  .amdhsa_kernarg_size 88
  .amdhsa_user_sgpr_count 2
  .amdhsa_user_sgpr_kernarg_segment_ptr 1
  .amdhsa_system_sgpr_workgroup_id_x 1
.end_amdhsa_kernel
"""

STAMPS = False
VERBOSE = True
WS_STAMP = 64 * MB
_names = {}
def stamp(a, kernel, name, real=False):
    if not STAMPS: return
    lst = _names.setdefault(kernel, [])
    if name not in lst: lst.append(name)
    i = lst.index(name)
    a(f"{'s_memrealtime' if real else 's_memtime'} s[62:63]")
    a("s_waitcnt lgkmcnt(0)")
    a(f"s_mov_b32 s{64+i}, s62")
def stamp_flush(a, kernel, kidx, ws_lo, ws_hi, wave_sgpr):
    if not STAMPS: return
    n = len(_names[kernel])
    a(f"s_add_u32 s96, {ws_lo}, {WS_STAMP + kidx*MB}")
    a(f"s_addc_u32 s97, {ws_hi}, 0")
    a(f"s_mov_b32 s98, {MB}")
    a("s_mov_b32 s99, 0x20000")
    a("v_mov_b32 v2, 0")
    for i in range(n):
        a(f"v_writelane_b32 v2, s{64+i}, {i}")
    a("s_lshl_b32 s62, s2, 3")
    a(f"s_add_u32 s62, s62, s{wave_sgpr}")
    a("s_lshl_b32 s62, s62, 8")
    a("v_and_b32 v3, 63, v0")
    a("v_lshlrev_b32 v3, 2, v3")
    a("buffer_store_dword v2, v3, s[96:99], s62 offen")
```

```python
import sys, os, importlib
sys.path.insert(0, os.path.dirname(__file__))
from asmlib import fix_hazards, check
from common import *

HEADER = open("gated_mix__linear_kernel_hedgehog__mha_block__prompt.s.ref").read().split("; Override launch")[0]

def build(mods, path):
    launches, body, descs = [], [], []
    for m in mods:
        lines, nv = m.gen()
        lines = fix_hazards(lines)
        txt = "\n".join(l if (l.endswith(":") or l.startswith(".")) else "    " + l for l in lines) + "\n"
        msgs = check(txt)
        assert not msgs, msgs
        launches.append(f"; @launch kernel={m.NAME} grid=(256,1,1) block=({getattr(m,'BLOCK',512)},1,1) lds={m.LDS}")
        body.append(txt)
        descs.append(kernel_desc(m.NAME, nv))
    out = HEADER + "\n".join(launches) + "\n"
    out += '.amdgcn_target "amdgcn-amd-amdhsa--gfx950"\n.text\n' + "\n".join(body)
    out += '.section .rodata,"a"\n' + "".join(".p2align 6\n" + d for d in descs)
    open(path, "w").write(out)
    return out

if __name__ == "__main__":
    args = sys.argv[2:]
    import common, json
    if "--stamps" in args:
        args.remove("--stamps"); common.STAMPS = True
    for x in list(args):
        if "=" in x:
            args.remove(x); k, val = x.split("="); mn, attr = k.split(".")
            setattr(importlib.import_module(mn), attr, eval(val))
    names = args or ["k1", "k2", "k3"]
    mods = [importlib.import_module(n) for n in names]
    out = build(mods, sys.argv[1])
    if common.STAMPS: json.dump(common._names, open(sys.argv[1] + ".stamps.json", "w"))
    print("wrote", sys.argv[1], len(out), "bytes")
```
